```python
import torch

def _softmax(x, axis=-1):
    return torch.softmax(x, dim=axis)
def _gelu(x):
    return torch.nn.functional.gelu(x, approximate="tanh")
def _silu(x):
    return torch.nn.functional.silu(x)
def _sigmoid(x):
    return torch.sigmoid(x)
def _layernorm(x, axis=-1, eps=1e-5):
    m = x.mean(dim=axis, keepdim=True)
    v = x.var(dim=axis, keepdim=True, unbiased=False)
    return (x - m) / torch.sqrt(v + eps)
def _scatter_add(tgt, idx, src, axis=0):
    return tgt.clone().index_add_(axis, idx, src)
def _segment_sum(src, seg, n):
    out = torch.zeros((n,) + src.shape[1:], dtype=src.dtype)
    return out.index_add_(0, seg, src)
def _pad(x, pw):
    flat = tuple(v for pair in reversed(pw) for v in pair)
    return torch.nn.functional.pad(x, flat)

kernel_name = 'standalone__mha_block_cached__near_ridge'

def setup_inputs():

    _w = (lambda a: (lambda t: t.to(torch.bfloat16) if t.is_floating_point() else t)(torch.as_tensor(a)))
    B, Sq, D = 8, 192, 576
    H, Sk, Dh = 32, 2048, 128
    return {
        "x": _w((lambda *s: torch.randn(*s, dtype=torch.bfloat16) * 0.8)(B, Sq, D)),
        "k_cache": _w((lambda *s: torch.randn(*s, dtype=torch.bfloat16) * 0.8)(B, H, Sk, Dh)),
        "v_cache": _w((lambda *s: torch.randn(*s, dtype=torch.bfloat16) * 0.05)(B, H, Sk, Dh)),
        "wq": _w((lambda *s: torch.randn(*s, dtype=torch.bfloat16) * 0.8)(D, H * Dh) * (D ** -0.5)),
        "wo": _w((lambda *s: torch.randn(*s, dtype=torch.bfloat16) * 0.05)(H * Dh, D) * ((H * Dh) ** -0.5)),
    }

def reference(x, k_cache, v_cache, wq, wo):
    B, Sq, D = x.shape
    H, Dh = 32, 128
    q = (lambda x, *d: x.permute(*d))((x @ wq).reshape(B, Sq, H, Dh), 0, 2, 1, 3)
    scores = torch.einsum("bhqd,bhkd->bhqk", q, k_cache) * (Dh ** -0.5)
    p = _softmax(scores, axis=-1)
    o = torch.einsum("bhqk,bhkd->bhqd", p, v_cache)
    return (lambda x, *d: x.permute(*d))(o, 0, 2, 1, 3).reshape(B, Sq, H * Dh) @ wo
```

```python
import re

class Ins:
    __slots__ = ("text", "op", "ops", "mods", "kind", "rd", "wr", "tag", "srcC", "srcAB")
    def __init__(self, text, tag=None):
        self.text = text
        self.tag = tag
        t = text.split(";")[0].strip()
        self.op = t.split()[0]
        rest = t[len(self.op):].strip()
        ops = []; cur = ""; depth = 0
        for ch in rest:
            if ch == "[": depth += 1
            if ch == "]": depth -= 1
            if ch == "," and depth == 0:
                ops.append(cur.strip()); cur = ""
            else: cur += ch
        if cur.strip(): ops.append(cur.strip())
        mods = []
        if ops:
            parts = ops[-1].split()
            ops[-1] = parts[0] if parts else ""
            mods = parts[1:]
        self.ops = ops; self.mods = mods
        self.srcC = set(); self.srcAB = set()
        self.classify()

    @staticmethod
    def regs(tok):
        tok = tok.strip()
        neg = tok.lstrip("-|").rstrip("|")
        m = re.fullmatch(r"([vas])(\d+)", neg)
        if m: return {(m.group(1), int(m.group(2)))}
        m = re.fullmatch(r"([vas])\[(\d+):(\d+)\]", neg)
        if m: return {(m.group(1), i) for i in range(int(m.group(2)), int(m.group(3)) + 1)}
        if neg == "vcc": return {("s", "vcc")}
        if neg in ("vcc_lo", "vcc_hi"): return {("s", "vcc")}
        if neg == "exec": return {("s", "exec")}
        if neg == "m0": return {("s", "m0")}
        return set()

    def classify(self):
        op = self.op; o = self.ops; R = Ins.regs
        rd = set(); wr = set()
        if op.startswith("v_mfma"):
            self.kind = "mfma"
            wr = R(o[0]); self.srcAB = R(o[1]) | R(o[2]); self.srcC = R(o[3]); rd = self.srcAB | self.srcC
        elif op.startswith("ds_"):
            self.kind = "ds"
            if op.startswith("ds_read"):
                wr = R(o[0]); rd = R(o[1])
            elif op.startswith("ds_write"):
                for x in o: rd |= R(x)
            elif op.startswith("ds_bpermute") or op.startswith("ds_swizzle"):
                wr = R(o[0])
                for x in o[1:]: rd |= R(x)
            else:
                for x in o: rd |= R(x)
        elif op.startswith("buffer_") or op.startswith("global_"):
            self.kind = "vmem"
            isdma = "lds" in self.mods
            if "load" in op and not isdma:
                wr = R(o[0])
                for x in o[1:]: rd |= R(x)
            elif "load" in op and isdma:
                for x in o: rd |= R(x)
                rd |= {("s", "m0")}
            elif "atomic" in op:
                for x in o: rd |= R(x)
                if "sc0" in self.mods: wr = R(o[0])
            else:
                for x in o: rd |= R(x)
        elif op.startswith("v_"):
            self.kind = "valu"
            if op.startswith("v_cmp"):
                wr = R(o[0])
                for x in o[1:]: rd |= R(x)
                if op.startswith("v_cmpx"): wr |= {("s", "exec")}
            elif op.startswith("v_swap") or op.startswith("v_permlane16_swap") or op.startswith("v_permlane32_swap"):
                wr = R(o[0]) | R(o[1]); rd = set(wr)
            elif op.startswith("v_add_co") or op.startswith("v_addc_co") or op.startswith("v_sub_co"):
                wr = R(o[0]) | R(o[1])
                for x in o[2:]: rd |= R(x)
            else:
                wr = R(o[0])
                for x in o[1:]: rd |= R(x)
                if op.startswith("v_fmac") or op.startswith("v_dot2c") or op.startswith("v_pk_fmac"): rd |= R(o[0])
                if op.startswith("v_cndmask") and len(o) == 3: rd |= {("s", "vcc")}
        elif op.startswith("s_"):
            self.kind = "salu"
            if op in ("s_waitcnt", "s_nop", "s_barrier", "s_endpgm", "s_branch", "s_sleep", "s_setprio") or op.startswith("s_cbranch"):
                self.kind = "ctrl"
            elif op.startswith("s_load") or op.startswith("s_memtime") or op.startswith("s_memrealtime"):
                self.kind = "smem"
                wr = R(o[0])
                for x in o[1:]: rd |= R(x)
            elif op.startswith("s_cmp"):
                for x in o: rd |= R(x)
            elif op.startswith("s_and_saveexec") or op.startswith("s_or_saveexec"):
                wr = R(o[0]) | {("s", "exec")}; rd = R(o[1]) | {("s", "exec")}
            else:
                wr = R(o[0])
                for x in o[1:]: rd |= R(x)
        else:
            raise ValueError("unknown instr: " + self.text)
        self.rd = rd; self.wr = wr

    def states(self):
        if self.op == "s_nop": return int(self.ops[0]) + 1
        return 1

TRANS = ("v_exp_f32", "v_log_f32", "v_rcp_f32", "v_rsq_f32", "v_sqrt_f32", "v_sin_f32", "v_cos_f32")

def is_label(s): return s.endswith(":")

class Prog:
    def __init__(self): self.lines = []
    def __call__(self, *texts):
        for t in texts:
            for ln in t.split("\n"):
                ln = ln.strip()
                if ln: self.lines.append(ln)
    def extend(self, other): self.lines.extend(other.lines if isinstance(other, Prog) else other)
    def text(self): return "\n".join(self.lines) + "\n"

def parse_trace(lines):
    out = []
    for ln in lines:
        t = ln.split(";")[0].strip()
        if not t or t.startswith(".") or is_label(t): continue
        out.append(Ins(ln))
    return out

def waitcnt_vals(ins):
    vm = lg = None
    m = re.search(r"vmcnt\((\d+)\)", ins.text)
    if m: vm = int(m.group(1))
    m = re.search(r"lgkmcnt\((\d+)\)", ins.text)
    if m: lg = int(m.group(1))
    return vm, lg

def check(lines, name="", verbose=True):
    tr = parse_trace(lines)
    errs = []
    n = len(tr)
    def dist_iter(i, maxd):
        d = 0; j = i - 1
        while j >= 0 and d < maxd:
            yield j, d
            d += tr[j].states(); j -= 1
    for i, c in enumerate(tr):
        for j, d in dist_iter(i, 12):
            p = tr[j]
            need = 0; why = ""
            vw = {r for r in p.wr if r[0] in "va"}
            if p.kind == "valu":
                if c.kind == "mfma" and (vw & c.rd): need, why = 2, "valu->mfma"
                if p.op in TRANS and c.kind in ("valu",) and c.op not in TRANS and (vw & c.rd): need, why = max(need, 1), "trans->valu"
                if p.op in TRANS and c.kind in ("ds", "vmem") and (vw & c.rd): need, why = max(need, 1), "trans->mem (pad anyway)"
                if c.op.startswith("v_readfirstlane") or c.op.startswith("v_readlane"):
                    if vw & c.rd: need, why = max(need, 1), "valu->readlane"
                if c.op.startswith("v_permlane") and (vw & c.rd): need, why = max(need, 2), "valu->permlane"
                if c.kind == "valu" and any(m.startswith("row_") or m.startswith("quad_perm") for m in c.mods) and (vw & c.rd):
                    need, why = max(need, 2), "valu->dpp"
                sw = {r for r in p.wr if r[0] == "s"}
                if sw:
                    if c.kind == "valu" and (sw & c.rd): need, why = max(need, 2), "valu sgpr->valu"
                    if c.kind == "vmem" and (sw & c.rd): need, why = max(need, 5), "valu sgpr->vmem"
                    if c.kind in ("salu",) and (sw & c.rd): need, why = max(need, 4), "valu sgpr->salu(pad)"
                    if ("s", "exec") in sw and c.kind == "mfma": need, why = max(need, 4), "valu exec->mfma"
                if p.op.startswith("v_dot2") and (vw & (c.rd | c.wr)) and c.kind in ("valu", "ds", "vmem", "mfma"):
                    if not (c.op == p.op and (vw & c.rd) and not (vw & (Ins.regs(c.ops[1]) | Ins.regs(c.ops[2])))):
                        need, why = max(need, 3), "dot->other"
            if p.kind == "mfma":
                if c.kind == "mfma":
                    if vw & c.srcAB: need, why = 8, "mfmaD->mfmaAB"
                    if vw & c.srcC and vw != c.srcC: need, why = max(need, 6), "mfmaD->partial C"
                    if (vw & c.wr) and vw != c.srcC and not (vw & c.srcC):
                        pass
                elif c.kind in ("valu", "ds", "vmem"):
                    if vw & (c.rd | c.wr): need, why = 8, "mfmaD->valu/mem"
                if c.kind == "valu" and (p.srcC & c.wr): need, why = max(need, 3), "mfmaC WAR valu"
            if p.kind == "salu" and ("s", "m0") in p.wr and c.kind == "vmem" and ("s", "m0") in c.rd:
                need, why = max(need, 1), "m0->dma"
            if p.kind == "vmem" and ("store" in p.op) and ("x4" in p.op or "x3" in p.op):
                data = Ins.regs(p.ops[0]) if p.op.startswith("buffer") else Ins.regs(p.ops[1])
                if data & c.wr and c.kind in ("valu", "mfma"): need, why = max(need, 2), "store data WAR"
            if need > d:
                errs.append(f"{name} HAZ[{why}] need {need} have {d}: '{p.text}' -> '{c.text}' (idx {j}->{i})")
    vmq = []
    lgq = []
    smem_out = False
    for i, c in enumerate(tr):
        if c.op == "s_waitcnt":
            vm, lg = waitcnt_vals(c)
            if vm is not None:
                while len(vmq) > vm: vmq.pop(0)
            if lg is not None:
                if smem_out and lg != 0:
                    pass
                while len(lgq) > lg: lgq.pop(0)
                if lg == 0: smem_out = False
            continue
        touched = c.rd | c.wr
        for (j, regs) in vmq:
            if regs & touched:
                errs.append(f"{name} VM pending: '{tr[j].text}' -> '{c.text}' (idx {j}->{i})")
        for (j, regs) in lgq:
            if regs & touched:
                errs.append(f"{name} LGKM pending: '{tr[j].text}' -> '{c.text}' (idx {j}->{i})")
        if c.kind == "vmem":
            vmq.append((i, {r for r in c.wr}))
            if len(vmq) > 63: errs.append(f"{name} vmcnt overflow at idx {i}: {c.text}")
        elif c.kind == "ds":
            lgq.append((i, {r for r in c.wr}))
        elif c.kind == "smem":
            lgq.append((i, {r for r in c.wr})); smem_out = True
    if verbose:
        for e in errs[:40]: print(e)
        print(f"check {name}: {len(tr)} instrs, {len(errs)} problems")
    return errs
```

```python
import sys, argparse
from asmlib import *

K = "standalone__mha_block_cached__near_ridge_kernel"

V_LANE = 1
V_VO0, V_VO1 = 2, 3
V_AK = 4
V_AV = 8
V_L = 16
V_T0, V_T1 = 22, 23
V_S = 24
V_P = 72
V_NM = 120
V_O = 144
V_X = 240
A_O = 0
A_Q = 96
A_AF = 192
V_AW = 24
V_XO = 28
V_WO = 29
V_KE, V_KO = 30, 31
V_WARM = 32
S_W = 3
S_X, S_K, S_V, S_WQ, S_WO, S_OUT, S_DBG, S_WS = 4, 6, 8, 10, 12, 14, 16, 18
R_K, R_V, R_X, R_WQ, R_OF, R_WO, R_OUT = 20, 24, 28, 32, 36, 40, 44
S_H, S_B, S_KH, S_QG = 48, 49, 50, 51
S_U4 = 52
S_LC = 53
S_T = 54
S_KOFF, S_VOFF, S_M0K, S_M0V = 60, 61, 62, 63
S_CNT, S_PASS = 64, 65
S_C = 66
S_C2 = 68
S_EX = 76
S_ST = 80

LDS_RING = 0
LDS_X = 131072
OOB = 0x40000000

def srd(r): return f"s[{r}:{r+3}]"
def vq(r, n=4): return f"v[{r}:{r+n-1}]"
def aq(r, n=4): return f"a[{r}:{r+n-1}]"

def S_reg(kt, qb): return V_S + (kt * 6 + qb) * 4
def P_reg(par, qb): return V_P + (par * 6 + qb) * 4
def NM_reg(qb): return V_NM + qb * 4
def O_op(i, qb):
    if i < 4: return vq(V_O + (i * 6 + qb) * 4)
    return aq(A_O + ((i - 4) * 6 + qb) * 4)
def Q_op(qb, ks): return aq(A_Q + (qb * 4 + ks) * 4)
def AF_op(n): return aq(A_AF + (n & 3) * 4)

class VM:
    def __init__(s): s.q = []
    def issue(s, tag): s.q.append(tag)
    def need(s, pred):
        idx = [i for i, t in enumerate(s.q) if pred(t)]
        if not idx: return None
        return min(63, len(s.q) - 1 - max(idx))
    def copy(s):
        v = VM(); v.q = list(s.q); return v

def stamp(p, idx, opt):
    if not opt.stamps: return
    p(f"s_memrealtime s[{S_T+4}:{S_T+5}]")
    p("s_waitcnt lgkmcnt(0)")
    p(f"s_mov_b32 s{S_ST+idx}, s{S_T+4}")

def gen_prologue(p, opt):
    p("s_cmp_ge_u32 s2, 256", "s_cbranch_scc1 L_end")
    p("s_load_dwordx16 s[4:19], s[0:1], 0")
    p(f"v_and_b32 v{V_LANE}, 63, v0")
    p("v_lshrrev_b32 v0, 6, v0")
    p("s_and_b32 s48, s2, 3", "s_lshl_b32 s48, s48, 3", "s_bfe_u32 s49, s2, 0x30003")
    p(f"v_readfirstlane_b32 s{S_W}, v0")
    p("s_add_u32 s48, s48, s49")
    p("s_bfe_u32 s49, s2, 0x10002", "s_lshl_b32 s49, s49, 2", "s_lshr_b32 s50, s2, 6", "s_add_u32 s49, s49, s50")
    stamp(p, 0, opt)
    g, i16, r, c = V_X, V_X + 1, V_X + 2, V_X + 3
    t0, t1 = V_X + 4, V_X + 5
    p(f"v_lshrrev_b32 v{g}, 4, v{V_LANE}")
    p(f"v_and_b32 v{i16}, 15, v{V_LANE}")
    p(f"v_bfe_u32 v{r}, v{V_LANE}, 2, 2")
    p(f"v_and_b32 v{c}, 3, v{V_LANE}")
    p(f"s_and_b32 s{S_KH}, s{S_W}, 1", f"s_lshr_b32 s{S_QG}, s{S_W}, 1")
    p(f"s_lshl_b32 s{S_U4}, s{S_KH}, 12")
    p(f"s_mul_i32 s{S_T}, s{S_W}, {48*1152}")
    p(f"v_mul_u32_u24 v{V_XO}, 1152, v{i16}")
    p(f"v_lshl_add_u32 v{V_XO}, v{g}, 4, v{V_XO}")
    p(f"v_add_u32 v{V_XO}, s{S_T}, v{V_XO}")
    p(f"v_lshlrev_b32 v{t0}, 2, v{g}")
    p(f"v_xor_b32 v{t0}, v{t0}, v{i16}")
    p(f"v_lshlrev_b32 v{t0}, 4, v{t0}")
    p(f"v_lshl_add_u32 v{V_WO}, v{g}, 13, v{t0}")
    p(f"s_lshl_b32 s{S_T}, s{S_KH}, 17")
    p(f"v_add_u32 v{V_WO}, s{S_T}, v{V_WO}")
    p(f"v_lshlrev_b32 v{t0}, 1, v{g}")
    p(f"v_xor_b32 v{t0}, v{t0}, v{i16}")
    p(f"v_lshlrev_b32 v{t0}, 4, v{t0}")
    p(f"v_lshl_add_u32 v{V_KE}, v{g}, 8, v{t0}")
    p(f"v_xor_b32 v{V_KO}, 128, v{V_KE}")
    p(f"s_lshl_b32 s{S_T}, s{S_QG}, 18")
    p(f"s_add_u32 s{S_T}, s{S_T}, s{S_U4}")
    p(f"v_add_u32 v{V_VO0}, s{S_T}, v{V_KE}")
    p(f"v_add_u32 v{V_VO1}, s{S_T}, v{V_KO}")
    p(f"v_lshl_add_u32 v{t0}, v{g}, 3, v{r}")
    p(f"v_lshlrev_b32 v{t0}, 8, v{t0}")
    p(f"v_lshl_add_u32 v{t0}, v{r}, 6, v{t0}")
    p(f"v_lshl_add_u32 v{t0}, v{c}, 4, v{t0}")
    p(f"v_add_u32 v{V_AW}, {LDS_X}, v{t0}")
    for ks in range(1, 4):
        p(f"v_xor_b32 v{V_AW+ks}, {ks<<6}, v{V_AW}")
    p(f"v_and_b32 v{t0}, 7, v{V_LANE}")
    p(f"v_lshlrev_b32 v{t0}, 1, v{t0}")
    p(f"v_xor_b32 v{t0}, v{t0}, v{g}")
    p(f"v_lshlrev_b32 v{t0}, 4, v{t0}")
    p(f"v_lshl_add_u32 v{t0}, v{i16}, 8, v{t0}")
    p(f"s_lshl_b32 s{S_T}, s{S_KH}, 13")
    p(f"v_add_u32 v{V_AK}, s{S_T}, v{t0}")
    for ks in range(1, 4):
        p(f"v_xor_b32 v{V_AK+ks}, {ks<<6}, v{V_AK}")
    p(f"v_lshl_add_u32 v{t0}, v{g}, 2, v{r}")
    p(f"v_and_b32 v{t1}, 7, v{t0}")
    p(f"v_lshlrev_b32 v{t1}, 5, v{t1}")
    p(f"v_lshl_add_u32 v{t1}, v{t0}, 8, v{t1}")
    p(f"v_lshl_add_u32 v{t1}, v{c}, 3, v{t1}")
    p(f"s_lshl_b32 s{S_T}, s{S_KH}, 13")
    p(f"s_add_u32 s{S_T}, s{S_T}, 16384")
    p(f"v_add_u32 v{t1}, s{S_T}, v{t1}")
    p(f"s_lshl_b32 s{S_T}, s{S_KH}, 7")
    p(f"v_xor_b32 v{V_AV}, s{S_T}, v{t1}")
    for i in range(1, 8):
        p(f"v_xor_b32 v{V_AV+i}, {i<<5}, v{V_AV}")
    p("s_waitcnt lgkmcnt(0)")
    p(f"s_mul_i32 s{S_T}, s{S_B}, 221184")
    p(f"s_add_u32 s{R_X}, s{S_X}, s{S_T}", f"s_addc_u32 s{R_X+1}, s{S_X+1}, 0", f"s_mov_b32 s{R_X+2}, 221184", f"s_mov_b32 s{R_X+3}, 0x20000")
    p(f"s_lshl_b32 s{S_T}, s{S_H}, 8")
    p(f"s_add_u32 s{R_WQ}, s{S_WQ}, s{S_T}", f"s_addc_u32 s{R_WQ+1}, s{S_WQ+1}, 0")
    p(f"s_sub_u32 s{R_WQ+2}, 4718592, s{S_T}", f"s_mov_b32 s{R_WQ+3}, 0x20000")
    p(f"s_lshl_b32 s{S_T}, s{S_B}, 5", f"s_add_u32 s{S_T}, s{S_T}, s{S_H}", f"s_lshl_b32 s{S_T}, s{S_T}, 19")
    for (R, Sb) in ((R_K, S_K), (R_V, S_V)):
        p(f"s_add_u32 s{R}, s{Sb}, s{S_T}", f"s_addc_u32 s{R+1}, s{Sb+1}, 0", f"s_mov_b32 s{R+2}, 524288", f"s_mov_b32 s{R+3}, 0x20000")
    p(f"s_mov_b32 s{S_C2}, 18432", f"s_mov_b32 s{S_C2+1}, 36864")

def wq_lds(kk): return (kk & 3) * 8192

def emit_memop(p, vm, op, role):
    kind = op[0]
    if kind == "x":
        kk = op[1]
        for qb in range(3):
            so = "0" if qb == 0 else f"s{S_C2+qb-1}"
            a = (kk * 3 + qb) * 4
            p(f"buffer_load_dwordx4 {aq(a)}, v{V_XO}, {srd(R_X)}, {so} offen offset:{kk*64}")
            vm.issue(op)
    elif kind == "wq":
        kk = op[1]
        p(f"s_add_u32 m0, s{S_U4}, {LDS_X + wq_lds(kk)}")
        for ii in range(4):
            p(f"s_mov_b32 s{S_T+1+(ii&1)}, {kk*262144 + ii*31744}")
            p(f"buffer_load_dwordx4 v{V_WO}, {srd(R_WQ)}, s{S_T+1+(ii&1)} offen offset:{ii*1024} lds")
            vm.issue(op)
    elif kind == "kv":
        _, stage, isV, half = op
        tile = stage - isV
        p(f"s_add_u32 m0, s{S_U4}, {stage*32768 + isV*16384 + half*8192}")
        p(f"s_add_u32 s{S_T+1}, s{S_U4}, {tile*8192 + half*262144}")
        for ii in range(4):
            p(f"buffer_load_dwordx4 v{V_KE if ii%2==0 else V_KO}, {srd(R_V if isV else R_K)}, s{S_T+1} offen offset:{ii*1024} nt lds")
            vm.issue(op)
    elif kind == "warm":
        t = V_WARM
        p(f"s_and_b32 s{S_T+1}, s{S_B}, 3", f"s_mul_i32 s{S_T+1}, s{S_T+1}, 288", f"s_mul_i32 s{S_T+2}, s{S_W}, 72", f"s_add_u32 s{S_T+1}, s{S_T+1}, s{S_T+2}")
        p(f"v_add_u32 v{t}, s{S_T+1}, v{V_LANE}")
        p(f"v_and_b32 v{t+1}, 1, v{t}", f"v_lshrrev_b32 v{t}, 1, v{t}", f"v_lshlrev_b32 v{t}, 13, v{t}", f"v_lshl_add_u32 v{t}, v{t+1}, 7, v{t}")
        p(f"buffer_load_dword v{t+2}, v{t}, {srd(R_WQ)}, 0 offen")
        vm.issue(op)
        p(f"s_mov_b32 s{S_T+1}, {32*8192}")
        p(f"s_mov_b64 exec, 0xff")
        p(f"buffer_load_dword v{t+3}, v{t}, {srd(R_WQ)}, s{S_T+1} offen")
        p(f"s_mov_b64 exec, -1")
        vm.issue(op)
    else:
        raise ValueError(op)

def qproj_schedule(opt):
    kv = [("kv", s, v, hf) for s in range(4) for v in (0, 1) for hf in (0, 1) if not (s == 0 and v == 1)]
    kv.sort(key=lambda o: (o[1], o[2], o[3]))
    A_init = [("wq", 0), ("x", 0), ("warm",), ("wq", 1), ("x", 1), ("wq", 2), ("x", 2), ("wq", 3)] + [("x", k) for k in range(3, 14)]
    A_kk = {k: [] for k in range(18)}
    for k in range(18):
        if k + 4 < 18: A_kk[k].append(("wq", k + 4))
    for i, k in enumerate(range(14, 18)): A_kk[i + 1].insert(0, ("x", k))
    B_init = [("warm",)] + [("x", k) for k in range(0, 9)] + kv[:8]
    B_kk = {k: [] for k in range(18)}
    rest = [("x", k) for k in range(9, 18)] + kv[8:]
    for i, o in zip([0,1,2,3,4,5,6,7,8,9,10,11,12,13,14], rest): B_kk[i].append(o)
    return {"A": (A_init, A_kk), "B": (B_init, B_kk)}

def gen_qproj(p, opt, role, sched):
    vm = VM()
    init, perkk = sched
    for op in init: emit_memop(p, vm, op, role)
    stamp(p, 1, opt) if role == "A" else stamp(p, 1, opt)
    acc = lambda qb, ks, T: V_O + ((qb * 4 + ks) * 2 + T) * 4
    AFv = lambda n: V_X + (n & 3) * 4
    lg = []
    def read_frag(n):
        kk, f = divmod(n, 8); ks, T = divmod(f, 2)
        off = wq_lds(kk) + T * 8
        b = AFv(n)
        p(f"ds_read_b64_tr_b16 {vq(b,2)}, v{V_AW+ks} offset:{off}")
        p(f"ds_read_b64_tr_b16 {vq(b+2,2)}, v{V_AW+ks} offset:{off+1024}")
        lg.extend([n, n])
    def wait_frag(n):
        idx = max(i for i, t in enumerate(lg) if t == n)
        cnt = len(lg) - 1 - idx
        p(f"s_waitcnt lgkmcnt({cnt})")
        del lg[:idx + 1]
    n0 = vm.need(lambda t: t == ("wq", 0))
    if n0 is not None: p(f"s_waitcnt vmcnt({n0})")
    p("s_barrier")
    stamp(p, 9, opt)
    for n in range(3): read_frag(n)
    for kk in range(18):
        for f in range(8):
            n = kk * 8 + f
            if f == 1 and kk in (0, 4, 8, 12, 16) and opt.stamps:
                stamp(p, 10 + kk // 4, opt); lg.clear()
            if f == 5 and kk + 1 < 18:
                nn = vm.need(lambda t: t == ("wq", kk + 1))
                if nn is not None: p(f"s_waitcnt vmcnt({nn}) lgkmcnt(0)")
                else: p("s_waitcnt lgkmcnt(0)")
                p("s_barrier")
                lg.clear()
            if f == 0:
                nn = vm.need(lambda t: t == ("x", kk))
                p(f"s_waitcnt vmcnt({nn})")
            if n in lg: wait_frag(n)
            ks, T = divmod(f, 2)
            for qb in range(3):
                d = acc(qb, ks, T)
                c = "0" if kk == 0 else vq(d)
                p(f"v_mfma_f32_16x16x32_bf16 {vq(d)}, {vq(AFv(n))}, {aq((kk*3+qb)*4)}, {c}")
                if qb == 0:
                    if n + 3 < 144: read_frag(n + 3)
                    if f == 5:
                        for op in perkk.get(kk, []): emit_memop(p, vm, op, role)
    return vm

def gen_qfinish(p, opt):
    p(f"s_mov_b32 s{S_C}, 0x3e0293ee", f"s_mov_b32 s{S_C+1}, 0x3e0293ee")
    p("s_nop 7")
    for f in range(12):
        b = V_O + f * 8
        for i in range(0, 8, 2):
            p(f"v_pk_mul_f32 {vq(b+i,2)}, {vq(b+i,2)}, s[{S_C}:{S_C+1}]")
        for i in range(4):
            p(f"v_cvt_pk_bf16_f32 v{b+i}, v{b+2*i}, v{b+2*i+1}")
    p(f"s_mul_i32 s{S_T}, s{S_W}, 6144", f"s_xor_b32 s{S_T+1}, s{S_W}, 1", f"s_mul_i32 s{S_T+1}, s{S_T+1}, 6144")
    p(f"v_lshlrev_b32 v{V_T0}, 4, v{V_LANE}")
    p(f"v_add_u32 v{V_T0}, {LDS_X}, v{V_T0}")
    p(f"v_add_u32 v{V_T1}, s{S_T+1}, v{V_T0}")
    p(f"v_add_u32 v{V_T0}, s{S_T}, v{V_T0}")
    for rnd in range(2):
        p("s_barrier")
        for i in range(6):
            f = rnd * 6 + i
            p(f"ds_write_b128 v{V_T0}, {vq(V_O + f*8)} offset:{i*1024}")
        p("s_waitcnt lgkmcnt(0)", "s_barrier")
        for i in range(6):
            f = rnd * 6 + i
            p(f"ds_read_b128 {aq(A_Q + f*4)}, v{V_T0} offset:{i*1024}")
            p(f"ds_read_b128 {aq(A_Q + 48 + f*4)}, v{V_T1} offset:{i*1024}")
        p("s_waitcnt lgkmcnt(0)")

def footer(p):
    p("L_end:", "s_endpgm")
    p('.section .rodata,"a"', ".p2align 6")
    p(f".amdhsa_kernel {K}", ".amdhsa_next_free_vgpr 512", ".amdhsa_next_free_sgpr 102", ".amdhsa_accum_offset 256",
      ".amdhsa_group_segment_fixed_size 0", ".amdhsa_kernarg_size 64", ".amdhsa_user_sgpr_count 2",
      ".amdhsa_user_sgpr_kernarg_segment_ptr 1", ".amdhsa_system_sgpr_workgroup_id_x 1", ".end_amdhsa_kernel")

def header(p):
    p.lines.append("; @launch grid=(256,1,1) block=(256,1,1) lds=163840")
    p('.amdgcn_target "amdgcn-amd-amdhsa--gfx950"', ".text", f".globl {K}", ".p2align 8", f".type {K},@function", f"{K}:")

BAR_SLOT = 82
KDMA_SLOTS = [84, 92, 8, 20]
VDMA_SLOTS = [32, 44, 56, 68]
IT0 = 26

def item_ops(kt, qb, par):
    s = S_reg(kt, qb); pr = P_reg(par, qb) + 2 * kt; l = V_L + qb
    e = [f"v_exp_f32 v{s+r}, v{s+r}" for r in range(4)]
    a = [f"v_add_f32 v{l}, v{l}, v{s+r}" for r in range(4)]
    c = [f"v_cvt_pk_bf16_f32 v{pr}, v{s}, v{s+1}", f"v_cvt_pk_bf16_f32 v{pr+1}, v{s+2}, v{s+3}"]
    return [[e[0]], [e[1]], [e[2]], [e[3]], [a[0], c[0]], [a[1], c[1]], [a[2], a[3]]]

class LG:
    def __init__(s): s.q = []
    def add(s, tag, n=1): s.q.extend([tag] * n)
    def wait(s, p, tag):
        if tag not in s.q: return
        idx = max(i for i, t in enumerate(s.q) if t == tag)
        p(f"s_waitcnt lgkmcnt({len(s.q)-1-idx})")
        del s.q[:idx + 1]

def gen_tile(p, opt, lg, par, so, doA, doB, firstPV, prevItems, vmwait, dmaK23, dmaV, nextA, toggle, dmaK01=True, barrier=True):
    pre = [[] for _ in range(97)]; post = [[] for _ in range(97)]
    def place(items_start, kt, ppar, lo, hi, shift):
        for i in range(6):
            ops = item_ops(kt, i, ppar)
            for u in range(7):
                sl = items_start + 7 * i + u - shift
                if lo <= sl < hi: post[sl].extend(ops[u])
    if doA:
        place(IT0, 0, par, 0, 96, 0)
        place(IT0 + 42, 1, par, 0, 96, 0)
    if prevItems:
        place(IT0 + 42, 1, par ^ 1, 0, 96, 96)
    def read_for(n, off_so):
        buf = AF_op(n)
        b0 = A_AF + (n & 3) * 4
        if n < 8:
            kt, ks = n >> 2, n & 3
            return ([f"ds_read_b128 {buf}, v{V_AK+ks} offset:{off_so + kt*4096}"], 1)
        i = n - 8
        return ([f"ds_read_b64_tr_b16 {aq(b0,2)}, v{V_AV+i} offset:{off_so}",
                 f"ds_read_b64_tr_b16 {aq(b0+2,2)}, v{V_AV+i} offset:{off_so+4096}"], 2)
    reads = {}
    for n in range(16):
        t = n + 3
        if t < 16:
            if (t < 8 and doA) or (t >= 8 and doB): reads[n * 6] = (t, so, 0)
        else:
            t -= 16
            if nextA: reads[max(n * 6, BAR_SLOT)] = (t, so ^ 32768, 1)
            elif nextA is False and opt_final_reads(t): pass
    if dmaK23:
        for ii in (2, 3):
            post[KDMA_SLOTS[ii]].append(f"buffer_load_dwordx4 v{V_VO0 if ii%2==0 else V_VO1}, {srd(R_K)}, s{S_KOFF} offen offset:{ii*1024} nt lds")
    if dmaV:
        post[30].append(f"s_add_u32 m0, s{S_M0K}, 16384")
        for ii in range(4):
            post[VDMA_SLOTS[ii]].append(f"buffer_load_dwordx4 v{V_VO0 if ii%2==0 else V_VO1}, {srd(R_V)}, s{S_VOFF} offen offset:{ii*1024} nt lds")
    if dmaK01:
        post[74].extend([f"s_mov_b32 s{S_VOFF}, s{S_KOFF}", f"s_lshl_b32 s{S_KOFF}, s{S_CNT}, 13"])
        post[75].extend([f"s_cmp_lt_u32 s{S_CNT}, 32", f"s_cselect_b32 s{S_KOFF}, s{S_KOFF}, s{S_C2+2}"])
        post[76].extend([f"s_add_u32 s{S_CNT}, s{S_CNT}, 1"])
        if dmaV or True:
            post[77].extend([f"s_add_u32 s{S_M0K}, s{S_M0K}, 32768", f"s_and_b32 s{S_M0K}, s{S_M0K}, 0x1ffff"])
        post[BAR_SLOT].append(f"s_mov_b32 m0, s{S_M0K}")
        for ii in (0, 1):
            post[KDMA_SLOTS[ii]].append(f"buffer_load_dwordx4 v{V_VO0 if ii%2==0 else V_VO1}, {srd(R_K)}, s{S_KOFF} offen offset:{ii*1024} nt lds")
    if toggle == "K":
        for ks, sl in enumerate((20, 21, 22, 27)):
            post[sl].append(f"v_xor_b32 v{V_AK+ks}, 0x10000, v{V_AK+ks}")
    if toggle == "V":
        for i in range(8):
            post[15 + i].append(f"v_xor_b32 v{V_AV+i}, 0x10000, v{V_AV+i}")
    for sl in range(96):
        n, qb = divmod(sl, 6)
        active = (n < 8 and doA) or (n >= 8 and doB)
        if sl == BAR_SLOT and barrier:
            p(f"s_waitcnt vmcnt({vmwait}) lgkmcnt(0)")
            p("s_barrier")
            lg.q.clear()
        if active:
            if qb == 0: lg.wait(p, n)
            if n < 8:
                kt, ks = n >> 2, n & 3
                d = vq(S_reg(kt, qb))
                c = vq(NM_reg(qb)) if ks == 0 else d
                p(f"v_mfma_f32_16x16x32_bf16 {d}, {AF_op(n)}, {Q_op(qb, ks)}, {c}")
            else:
                d = O_op(n - 8, qb)
                c = "0" if firstPV else d
                p(f"v_mfma_f32_16x16x32_bf16 {d}, {AF_op(n)}, {vq(P_reg(par ^ 1, qb))}, {c}")
        if sl in reads:
            t, off, nxt = reads[sl]
            ins, cnt = read_for(t, off)
            p(*ins); lg.add(t, cnt)
        p(*post[sl])

def opt_final_reads(t): return False

def gen_main(p, opt, vms):
    def need(stage, extra):
        vals = []
        for r, vm in vms.items():
            idx = [i for i, t in enumerate(vm.q) if t[0] == "kv" and t[1] == stage]
            if idx: vals.append(len(vm.q) - 1 - max(idx) + extra)
        return min(63, min(vals))
    p("L_main:")
    for i in range(6): p(f"v_mov_b32 v{V_L+i}, 0")
    p(f"s_mov_b32 s{S_CNT}, 4", f"s_mov_b32 s{S_KOFF}, {3<<13}", f"s_mov_b32 s{S_C2+2}, {OOB}")
    p(f"s_lshl_b32 s{S_M0K}, s{S_W}, 12", f"s_add_u32 s{S_M0K}, s{S_M0K}, {3*32768}")
    p(f"s_waitcnt vmcnt({need(0,0)})", "s_barrier")
    lg = LG()
    for n in range(3):
        ks = n & 3
        p(f"ds_read_b128 {AF_op(n)}, v{V_AK+ks} offset:0"); lg.add(n)
    stamp(p, 3, opt)
    if opt.stamps: lg.q.clear()
    gen_tile(p, opt, lg, par=0, so=0, doA=True, doB=False, firstPV=False, prevItems=False, vmwait=need(1, 0),
             dmaK23=False, dmaV=False, nextA=True, toggle=None)
    gen_tile(p, opt, lg, par=1, so=32768, doA=True, doB=True, firstPV=True, prevItems=True, vmwait=need(2, 2 + 6),
             dmaK23=True, dmaV=True, nextA=True, toggle="K")
    p(f"s_mov_b32 s{S_LC}, 15")
    p(".p2align 6")
    p("L_loop:")
    st0 = list(lg.q)
    gen_tile(p, opt, lg, par=0, so=0, doA=True, doB=True, firstPV=False, prevItems=True, vmwait=16,
             dmaK23=True, dmaV=True, nextA=True, toggle="V")
    gen_tile(p, opt, lg, par=1, so=32768, doA=True, doB=True, firstPV=False, prevItems=True, vmwait=16,
             dmaK23=True, dmaV=True, nextA=True, toggle="K")
    assert st0 == lg.q, (st0, lg.q)
    p(f"s_sub_u32 s{S_LC}, s{S_LC}, 1", f"s_cmp_lg_u32 s{S_LC}, 0", "s_cbranch_scc1 L_loop")
    p("s_waitcnt lgkmcnt(0)"); lg.q.clear()
    gen_tile(p, opt, lg, par=0, so=0, doA=False, doB=True, firstPV=False, prevItems=True, vmwait=0,
             dmaK23=False, dmaV=False, nextA=False, toggle="V", dmaK01=False, barrier=False)

def gen_epilogue(p, opt):
    stamp(p, 4, opt)
    p("s_waitcnt vmcnt(0) lgkmcnt(0)", "s_barrier")
    p(f"v_lshlrev_b32 v{V_T0}, 4, v{V_LANE}")
    p(f"s_mul_i32 s{S_T}, s{S_W}, 24576", f"s_xor_b32 s{S_T+1}, s{S_W}, 1", f"s_mul_i32 s{S_T+1}, s{S_T+1}, 24576")
    p(f"v_add_u32 v{V_T1}, s{S_T+1}, v{V_T0}")
    p(f"v_add_u32 v{V_T0}, s{S_T}, v{V_T0}")
    for q in range(24):
        p(f"ds_write_b128 v{V_T0}, {aq(A_O + q*4)} offset:{q*1024}")
    T = V_X
    for i in range(6):
        p(f"v_mov_b32 v{T+i}, v{V_L+i}")
    p("s_nop 1")
    for i in range(6):
        p(f"v_permlane32_swap_b32 v{V_L+i}, v{T+i}")
    p("s_nop 1")
    for i in range(6):
        p(f"v_add_f32 v{V_L+i}, v{V_L+i}, v{T+i}")
    for i in range(6):
        p(f"v_mov_b32 v{T+i}, v{V_L+i}")
    p("s_nop 1")
    for i in range(6):
        p(f"v_permlane16_swap_b32 v{V_L+i}, v{T+i}")
    p("s_nop 1")
    for i in range(6):
        p(f"v_add_f32 v{V_L+i}, v{V_L+i}, v{T+i}")
    p(f"v_lshlrev_b32 v{T+6}, 2, v{V_LANE}")
    p(f"s_mul_i32 s{S_T}, s{S_W}, 1536", f"s_xor_b32 s{S_T+1}, s{S_W}, 1", f"s_mul_i32 s{S_T+1}, s{S_T+1}, 1536")
    p(f"v_add_u32 v{T+6}, {LDS_X}, v{T+6}")
    p(f"v_add_u32 v{T+7}, s{S_T+1}, v{T+6}")
    p(f"v_add_u32 v{T+6}, s{S_T}, v{T+6}")
    for i in range(6):
        p(f"ds_write_b32 v{T+6}, v{V_L+i} offset:{i*256}")
    p("s_waitcnt lgkmcnt(0)", "s_barrier")
    for i in range(6):
        p(f"ds_read_b32 v{T+i}, v{T+7} offset:{((i+3)%6)*256}")
    R = V_S
    for i in range(4):
        for qb in range(6):
            p(f"ds_read_b128 {vq(R + (i*6+qb)*4)}, v{V_T1} offset:{(i*6 + (qb+3)%6)*1024}")
    p("s_waitcnt lgkmcnt(15)")
    p("s_waitcnt lgkmcnt(0)") if False else None
    p("s_waitcnt lgkmcnt(0)")
    for i in range(6):
        p(f"v_add_f32 v{V_L+i}, v{V_L+i}, v{T+i}")
    p(f"s_mov_b32 s{S_T}, 0x17800000", f"s_mov_b32 s{S_T+1}, 0x67800000")
    p(f"s_mov_b64 s[{S_T+2}:{S_T+3}], 0")
    for i in range(6):
        p(f"v_cmp_nle_f32 vcc, s{S_T}, v{V_L+i}")
        p(f"s_nop 3" if False else "s_nop 0")
        p(f"v_rcp_f32 v{T+i}, v{V_L+i}")
        p("s_nop 1")
        p(f"s_or_b64 s[{S_T+2}:{S_T+3}], s[{S_T+2}:{S_T+3}], vcc")
        p(f"v_cmp_nge_f32 vcc, s{S_T+1}, v{V_L+i}")
        p("s_nop 3")
        p(f"s_or_b64 s[{S_T+2}:{S_T+3}], s[{S_T+2}:{S_T+3}], vcc")
    p(f"v_mov_b32 v{T+8}, 0", f"v_mov_b32 v{T+9}, 0")
    for i in range(4):
        for qb in range(6):
            o = V_O + (i * 6 + qb) * 4; r = R + (i * 6 + qb) * 4
            for e in (0, 2):
                p(f"v_pk_add_f32 {vq(o+e,2)}, {vq(o+e,2)}, {vq(r+e,2)}")
    for i in range(4):
        for qb in range(6):
            o = V_O + (i * 6 + qb) * 4
            for e in range(4):
                p(f"v_mul_f32 v{o+e}, v{o+e}, v{T+qb}")
    for qb in range(6):
        for mm in range(2):
            d = R + (qb * 2 + mm) * 4
            for hh in range(2):
                o = V_O + ((2 * mm + hh) * 6 + qb) * 4
                p(f"v_cvt_pk_bf16_f32 v{d+2*hh}, v{o}, v{o+1}")
                p(f"v_cvt_pk_bf16_f32 v{d+2*hh+1}, v{o+2}, v{o+3}")
    for k in range(48):
        p(f"v_dot2_f32_bf16 v{T+8}, v{R+k}, v{T+9}, v{T+8}")
    p("s_nop 2")
    p(f"v_cmp_u_f32 vcc, v{T+8}, v{T+8}")
    p("s_nop 3")
    p(f"s_or_b64 s[{S_T+2}:{S_T+3}], s[{S_T+2}:{S_T+3}], vcc")
    p(f"s_cmp_lg_u64 s[{S_T+2}:{S_T+3}], 0")
    p(f"s_cselect_b32 s{S_T}, 1, 0")
    p(f"v_mov_b32 v{T+10}, s{S_T}")
    p(f"s_lshl_b32 s{S_T+1}, s{S_W}, 2", f"s_add_u32 s{S_T+1}, s{S_T+1}, {LDS_X+8192}")
    p(f"v_mov_b32 v{T+11}, s{S_T+1}")
    p(f"ds_write_b32 v{T+11}, v{T+10}")
    p("s_waitcnt lgkmcnt(0)", "s_barrier")
    p(f"v_mov_b32 v{T+11}, {LDS_X+8192}")
    p(f"ds_read_b128 {vq(T+12)}, v{T+11}")
    p("s_waitcnt lgkmcnt(0)")
    p(f"v_or_b32 v{T+12}, v{T+12}, v{T+13}", f"v_or_b32 v{T+14}, v{T+14}, v{T+15}", f"v_or_b32 v{T+12}, v{T+12}, v{T+14}")
    p("s_nop 0")
    p(f"v_readfirstlane_b32 s{S_T}, v{T+12}")
    p("s_nop 3")
    p(f"s_andn2_b32 s{S_T}, s{S_T}, s{S_PASS}")
    p(f"s_cmp_lg_u32 s{S_T}, 0", "s_cbranch_scc1 L_fallback")
    p(f"s_mov_b32 s{R_OF}, s{S_WS}", f"s_mov_b32 s{R_OF+1}, s{S_WS+1}", f"s_mov_b32 s{R_OF+2}, {8*12*32*4096}", f"s_mov_b32 s{R_OF+3}, 0x20000")
    p(f"s_mul_i32 s{S_T}, s{S_B}, 12", f"s_mul_i32 s{S_T+1}, s{S_QG}, 6", f"s_add_u32 s{S_T}, s{S_T}, s{S_T+1}")
    p(f"s_lshl_b32 s{S_T}, s{S_T}, 5", f"s_add_u32 s{S_T}, s{S_T}, s{S_H}", f"s_lshl_b32 s{S_T}, s{S_T}, 12")
    p(f"s_lshl_b32 s{S_T+1}, s{S_KH}, 11", f"s_add_u32 s{S_T}, s{S_T}, s{S_T+1}")
    p(f"v_lshlrev_b32 v{T}, 4, v{V_LANE}")
    p(f"s_mul_i32 s{S_T+1}, s{S_KH}, {3*131072}")
    p(f"s_add_u32 s{S_T+2}, s{S_T}, s{S_T+1}")
    p(f"s_sub_u32 s{S_T+3}, s{S_T}, s{S_T+1}", f"s_add_u32 s{S_T+3}, s{S_T+3}, {3*131072}")
    for qb in range(6):
        base = S_T + 2 if qb < 3 else S_T + 3
        for mm in range(2):
            p(f"buffer_store_dwordx4 {vq(R + (qb*2+mm)*4)}, v{T}, {srd(R_OF)}, s{base} offen offset:{mm*1024} sc1")
        if qb not in (2, 5): p(f"s_add_u32 s{base}, s{base}, 131072")

OD = 6
def gen_outproj(p, opt):
    ACC = 128; AFR = 192; BFR = 8; ADR = 224; VOF = 228; VWO = 232; T = V_X
    S_BP, S_TT, S_QT, S_NT = S_T, S_T + 1, S_T + 2, S_T + 3
    S_WOFF, S_OOFF, S_M0 = S_KOFF, S_VOFF, S_M0K
    vm = VM()
    for i in range(12): vm.issue(("st",))
    p(f"s_and_b32 s{S_BP}, s2, 7", f"s_lshr_b32 s{S_TT}, s2, 3")
    p(f"s_mov_b32 s{R_X}, s{S_DBG}", f"s_mov_b32 s{R_X+1}, s{S_DBG+1}", f"s_mov_b32 s{R_X+2}, 256", f"s_mov_b32 s{R_X+3}, 0x20000")
    p(f"s_cmp_ge_u32 s{S_TT}, 27", "s_cbranch_scc1 L_signal_only")
    p(f"s_cmp_ge_u32 s{S_TT}, 9", f"s_cselect_b32 s{S_QT}, 1, 0", f"s_cmp_ge_u32 s{S_TT}, 18", f"s_cselect_b32 s{S_QT}, 2, s{S_QT}")
    p(f"s_mul_i32 s{S_NT}, s{S_QT}, 9", f"s_sub_u32 s{S_NT}, s{S_TT}, s{S_NT}")
    p(f"s_mov_b32 s{R_WO}, s{S_WO}", f"s_mov_b32 s{R_WO+1}, s{S_WO+1}", f"s_mov_b32 s{R_WO+2}, 4718592", f"s_mov_b32 s{R_WO+3}, 0x20000")
    g, r, c, t0, t1 = T, T + 1, T + 2, T + 3, T + 4
    p(f"v_lshrrev_b32 v{g}, 4, v{V_LANE}", f"v_bfe_u32 v{r}, v{V_LANE}, 2, 2", f"v_and_b32 v{c}, 3, v{V_LANE}")
    p(f"v_lshrrev_b32 v{t0}, 3, v{V_LANE}", f"v_mul_u32_u24 v{t0}, 1152, v{t0}")
    p(f"v_and_b32 v{t1}, 7, v{V_LANE}", f"v_lshlrev_b32 v{VWO}, 1, v{g}", f"v_xor_b32 v{t1}, v{t1}, v{VWO}")
    p(f"v_lshl_add_u32 v{VWO}, v{t1}, 4, v{t0}")
    p(f"s_mul_i32 s{S_WOFF}, s{S_W}, {32*36864}", f"s_lshl_b32 s{S_T+4}, s{S_NT}, 7", f"s_add_u32 s{S_WOFF}, s{S_WOFF}, s{S_T+4}")
    p(f"s_lshl_b32 s{S_M0}, s{S_W}, 15")
    def wo_dma(k):
        p(f"s_add_u32 m0, s{S_M0}, {(k&7)*4096}")
        for ii in range(4):
            p(f"s_add_u32 s{S_T+4+(ii&1)}, s{S_WOFF}, {k*36864 + ii*8192}")
            p(f"buffer_load_dwordx4 v{VWO}, {srd(R_WO)}, s{S_T+4+(ii&1)} offen offset:{ii*1024} lds")
            vm.issue(("wo", k))
    for k in range(8): wo_dma(k)
    p(f"v_lshl_add_u32 v{t0}, v{g}, 2, v{r}")
    p(f"v_lshrrev_b32 v{t1}, 1, v{t0}", f"v_and_b32 v{t1}, 3, v{t1}", f"v_lshlrev_b32 v{t1}, 5, v{t1}")
    p(f"v_lshl_add_u32 v{t1}, v{t0}, 7, v{t1}", f"v_lshl_add_u32 v{t1}, v{c}, 3, v{t1}")
    p(f"v_add_u32 v{ADR}, s{S_M0}, v{t1}")
    for nb in range(1, 4): p(f"v_xor_b32 v{ADR+nb}, {nb<<5}, v{ADR}")
    p(f"v_lshlrev_b32 v{VOF}, 4, v{V_LANE}")
    for i in range(1, 4): p(f"v_add_u32 v{VOF+i}, {i*131072}, v{VOF}")
    p(f"s_mul_i32 s{S_OOFF}, s{S_BP}, 12", f"s_lshl_b32 s{S_T+4}, s{S_QT}, 2", f"s_add_u32 s{S_OOFF}, s{S_OOFF}, s{S_T+4}")
    p(f"s_lshl_b32 s{S_OOFF}, s{S_OOFF}, 17", f"s_add_u32 s{S_OOFF}, s{S_OOFF}, s{S_M0}")
    n = vm.need(lambda t: t == ("st",))
    p(f"s_waitcnt vmcnt({n})", "s_barrier")
    stamp(p, 5, opt)
    p(f"s_cmp_lg_u32 s{S_W}, 0", "s_cbranch_scc1 L_nopoll")
    p(f"s_lshl_b32 s{S_T+4}, s{S_B}, 5")
    p(f"v_mov_b32 v{t0}, 1", f"v_mov_b32 v{t1}, s{S_T+4}")
    p(f"s_mov_b64 s[{S_EX}:{S_EX+1}], exec", "s_mov_b64 exec, 1")
    p(f"buffer_atomic_add v{t0}, v{t1}, {srd(R_X)}, 0 offen sc1")
    p(f"s_lshl_b32 s{S_T+4}, s{S_BP}, 5")
    p(f"v_mov_b32 v{t1}, s{S_T+4}")
    p("L_poll:")
    p(f"buffer_load_dword v{t0}, v{t1}, {srd(R_X)}, 0 offen sc1")
    p("s_waitcnt vmcnt(0)")
    p(f"v_readfirstlane_b32 s{S_T+4}, v{t0}")
    p("s_nop 3")
    p(f"s_cmp_ge_u32 s{S_T+4}, 32", "s_cbranch_scc1 L_polled")
    p("s_sleep 1", "s_branch L_poll")
    p("L_polled:")
    p(f"s_mov_b64 exec, s[{S_EX}:{S_EX+1}]")
    p("L_nopoll:")
    p("s_barrier")
    stamp(p, 6, opt)
    def o_load(k):
        for i in range(4):
            if k & 3 == 0 and i == 0 and k > 0: p(f"s_add_u32 s{S_OOFF}, s{S_OOFF}, 4096")
            p(f"buffer_load_dwordx4 {vq(BFR + ((k % OD)*4 + i)*4)}, v{VOF+i}, {srd(R_OF)}, s{S_OOFF} offen offset:{(k&3)*1024} sc1")
            vm.issue(("o", k))
    for k in range(OD): o_load(k)
    def tr_reads(k):
        for nb in range(4):
            b = AFR + ((k & 1) * 4 + nb) * 4
            p(f"ds_read_b64_tr_b16 {vq(b,2)}, v{ADR+nb} offset:{(k&7)*4096}")
            p(f"ds_read_b64_tr_b16 {vq(b+2,2)}, v{ADR+nb} offset:{(k&7)*4096+2048}")
    p(f"s_waitcnt vmcnt({vm.need(lambda t: t == ('wo', 0))})")
    tr_reads(0)
    for k in range(32):
        p("s_waitcnt lgkmcnt(0)")
        if k + 8 < 32: wo_dma(k + 8)
        if k >= 1 and k - 1 + OD < 32: o_load(k - 1 + OD)
        need = [vm.need(lambda t: t == ("o", k))]
        if k + 1 < 32: need.append(vm.need(lambda t: t == ("wo", k + 1)))
        p(f"s_waitcnt vmcnt({min(need)})")
        first = True
        for nb in range(4):
            for i in range(4):
                d = vq(ACC + (nb * 4 + i) * 4)
                p(f"v_mfma_f32_16x16x32_bf16 {d}, {vq(AFR + ((k&1)*4+nb)*4)}, {vq(BFR + ((k % OD)*4+i)*4)}, {'0' if k == 0 else d}")
                if first and k + 1 < 32:
                    tr_reads(k + 1); first = False
    stamp(p, 7, opt)
    p(f"v_lshlrev_b32 v{t0}, 4, v{V_LANE}")
    p(f"v_add_u32 v{t1}, s{S_M0}, v{t0}")
    p("s_nop 7")
    for q in range(16):
        p(f"ds_write_b128 v{t1}, {vq(ACC + q*4)} offset:{q*1024}")
    p(f"s_lshl_b32 s{S_T+4}, s{S_W}, 12")
    p(f"v_add_u32 v{t0}, s{S_T+4}, v{t0}")
    p(f"v_add_u32 v{t1}, 0x10000, v{t0}")
    p("s_waitcnt lgkmcnt(0)", "s_barrier")
    R = 8
    for ww in range(4):
        for i in range(4):
            base = t0 if ww < 2 else t1
            p(f"ds_read_b128 {vq(R + (ww*4+i)*4)}, v{base} offset:{(ww&1)*32768 + i*1024}")
    p(f"s_mov_b32 s{R_OUT}, s{S_OUT}", f"s_mov_b32 s{R_OUT+1}, s{S_OUT+1}", f"s_mov_b32 s{R_OUT+2}, 1769472", f"s_mov_b32 s{R_OUT+3}, 0x20000")
    p(f"v_and_b32 v{t0}, 15, v{V_LANE}", f"v_mul_u32_u24 v{t0}, 1152, v{t0}", f"v_lshl_add_u32 v{t0}, v{g}, 3, v{t0}")
    p(f"s_mul_i32 s{S_T+4}, s{S_BP}, 192", f"s_lshl_b32 s{S_T+5}, s{S_QT}, 6", f"s_add_u32 s{S_T+4}, s{S_T+4}, s{S_T+5}")
    p(f"s_mul_i32 s{S_T+4}, s{S_T+4}, 1152", f"s_lshl_b32 s{S_T+5}, s{S_NT}, 7", f"s_add_u32 s{S_T+4}, s{S_T+4}, s{S_T+5}")
    p(f"s_lshl_b32 s{S_T+5}, s{S_W}, 5", f"s_add_u32 s{S_T+4}, s{S_T+4}, s{S_T+5}")
    p("s_waitcnt lgkmcnt(0)")
    for i in range(4):
        a, b, c2, d = (R + (ww * 4 + i) * 4 for ww in range(4))
        for e in (0, 2):
            p(f"v_pk_add_f32 {vq(a+e,2)}, {vq(a+e,2)}, {vq(b+e,2)}")
            p(f"v_pk_add_f32 {vq(c2+e,2)}, {vq(c2+e,2)}, {vq(d+e,2)}")
        for e in (0, 2):
            p(f"v_pk_add_f32 {vq(a+e,2)}, {vq(a+e,2)}, {vq(c2+e,2)}")
        p(f"v_cvt_pk_bf16_f32 v{a}, v{a}, v{a+1}", f"v_cvt_pk_bf16_f32 v{a+1}, v{a+2}, v{a+3}")
        p(f"buffer_store_dwordx2 {vq(a,2)}, v{t0}, {srd(R_OUT)}, s{S_T+4} offen")
        if i < 3: p(f"s_add_u32 s{S_T+4}, s{S_T+4}, {16*1152}")
    p("s_waitcnt vmcnt(0)")
    stamp(p, 8, opt)
    dump_stamps(p, opt)
    p("s_endpgm")
    p("L_signal_only:")
    p("s_waitcnt vmcnt(0)", "s_barrier")
    p(f"s_cmp_lg_u32 s{S_W}, 0", "s_cbranch_scc1 L_end")
    p(f"s_lshl_b32 s{S_T+4}, s{S_B}, 5")
    p(f"v_mov_b32 v{T}, 1", f"v_mov_b32 v{T+1}, s{S_T+4}")
    p("s_mov_b64 exec, 1")
    p(f"buffer_atomic_add v{T}, v{T+1}, {srd(R_X)}, 0 offen sc1")
    p("s_waitcnt vmcnt(0)")
    p("s_endpgm")

def dump_stamps(p, opt):
    if not opt.stamps: return
    p(f"s_cmp_lg_u32 s{S_W}, {opt.stampwave}", "s_cbranch_scc1 L_end")
    p(f"s_lshl_b32 s{S_T}, s2, 6", f"s_add_u32 s{S_T}, s{S_T}, {16<<20}")
    p(f"s_add_u32 s{S_T+2}, s{S_WS}, s{S_T}", f"s_addc_u32 s{S_T+3}, s{S_WS+1}, 0")
    p("s_mov_b64 exec, 1", "v_mov_b32 v0, 0")
    for i in range(0, 16, 4):
        for e in range(4): p(f"v_mov_b32 v{4+e}, s{S_ST+i+e}")
        p(f"global_store_dwordx4 v0, v[4:7], s[{S_T+2}:{S_T+3}] offset:{i*4}")
        p("s_nop 1")
    p("s_waitcnt vmcnt(0)")

def gen_fallback(p, opt):
    T = V_X
    p("L_fallback:")
    p(f"s_mov_b32 s{S_PASS}, 1")
    for i in range(6): p(f"v_mov_b32 v{V_L+i}, 0xff800000")
    p(f"s_mov_b32 s{S_CNT}, 0")
    p("L_fb_loop:")
    p(f"s_lshl_b32 m0, s{S_W}, 12", f"s_lshl_b32 s{S_KOFF}, s{S_CNT}, 13")
    for ii in range(4):
        p(f"buffer_load_dwordx4 v{V_VO0 if ii%2==0 else V_VO1}, {srd(R_K)}, s{S_KOFF} offen offset:{ii*1024} lds")
    p("s_waitcnt vmcnt(0)", "s_barrier")
    for kt in range(2):
        for ks in range(4):
            p(f"ds_read_b128 {AF_op(ks)}, v{V_AK+ks} offset:{kt*4096}")
        p("s_waitcnt lgkmcnt(0)")
        for ks in range(4):
            for qb in range(6):
                d = vq(S_reg(kt, qb))
                p(f"v_mfma_f32_16x16x32_bf16 {d}, {AF_op(ks)}, {Q_op(qb, ks)}, {'0' if ks == 0 else d}")
    p("s_nop 7")
    for kt in range(2):
        for qb in range(6):
            s = S_reg(kt, qb)
            p(f"v_max3_f32 v{V_L+qb}, v{s}, v{s+1}, v{V_L+qb}")
            p(f"v_max3_f32 v{V_L+qb}, v{s+2}, v{s+3}, v{V_L+qb}")
    p("s_barrier")
    p(f"s_add_u32 s{S_CNT}, s{S_CNT}, 1", f"s_cmp_lt_u32 s{S_CNT}, 32", "s_cbranch_scc1 L_fb_loop")
    for swp in ("v_permlane32_swap_b32", "v_permlane16_swap_b32"):
        for i in range(6): p(f"v_mov_b32 v{T+i}, v{V_L+i}")
        p("s_nop 1")
        for i in range(6): p(f"{swp} v{V_L+i}, v{T+i}")
        p("s_nop 1")
        for i in range(6): p(f"v_max_f32 v{V_L+i}, v{V_L+i}, v{T+i}")
    p(f"v_lshlrev_b32 v{T+6}, 2, v{V_LANE}")
    p(f"s_mul_i32 s{S_T}, s{S_W}, 1536", f"s_xor_b32 s{S_T+1}, s{S_W}, 1", f"s_mul_i32 s{S_T+1}, s{S_T+1}, 1536")
    p(f"v_add_u32 v{T+6}, {LDS_X}, v{T+6}")
    p(f"v_add_u32 v{T+7}, s{S_T+1}, v{T+6}")
    p(f"v_add_u32 v{T+6}, s{S_T}, v{T+6}")
    for i in range(6): p(f"ds_write_b32 v{T+6}, v{V_L+i} offset:{i*256}")
    p("s_waitcnt lgkmcnt(0)", "s_barrier")
    for i in range(6): p(f"ds_read_b32 v{T+i}, v{T+7} offset:{((i+3)%6)*256}")
    p("s_waitcnt lgkmcnt(0)")
    for i in range(6):
        p(f"v_max_f32 v{T+i}, v{T+i}, v{V_L+i}")
        for e in range(4): p(f"v_sub_f32 v{NM_reg(i)+e}, 0, v{T+i}")
    for s in range(4):
        for isV in (0, 1):
            if s == 0 and isV: continue
            p(f"s_lshl_b32 s{S_T}, s{S_W}, 12", f"s_add_u32 m0, s{S_T}, {s*32768 + isV*16384}")
            p(f"s_mov_b32 s{S_T+1}, {(s-isV)*8192}")
            for ii in range(4):
                p(f"buffer_load_dwordx4 v{V_VO0 if ii%2==0 else V_VO1}, {srd(R_V if isV else R_K)}, s{S_T+1} offen offset:{ii*1024} lds")
    p("s_waitcnt vmcnt(0)", "s_barrier")
    p("s_branch L_main")

def dump_q(p):
    p(f"s_mov_b32 s{R_OF}, s{S_WS}", f"s_mov_b32 s{R_OF+1}, s{S_WS+1}", f"s_mov_b32 s{R_OF+2}, {32<<20}", f"s_mov_b32 s{R_OF+3}, 0x20000")
    p(f"s_lshl_b32 s{S_T}, s2, 2", f"s_add_u32 s{S_T}, s{S_T}, s{S_W}", f"s_mul_i32 s{S_T}, s{S_T}, {24*1024}")
    p(f"v_lshlrev_b32 v{V_T0}, 4, v{V_LANE}")
    for f in range(24):
        p(f"buffer_store_dwordx4 {aq(A_Q + f*4)}, v{V_T0}, {srd(R_OF)}, s{S_T} offen")
        p(f"s_add_u32 s{S_T}, s{S_T}, 1024")
    p("s_waitcnt vmcnt(0)", "s_endpgm")

def main():
    ap = argparse.ArgumentParser()
    ap.add_argument("-o", default="k.s")
    ap.add_argument("--stop", default="")
    ap.add_argument("--stamps", action="store_true")
    ap.add_argument("--stampwave", type=int, default=0)
    opt = ap.parse_args()
    p = Prog(); header(p)
    pro = Prog(); gen_prologue(pro, opt)
    for i in range(24): pro(f"v_mov_b32 v{V_NM+i}, 0")
    pro(f"s_mov_b32 s{S_PASS}, 0")
    sched = qproj_schedule(opt)
    qa = Prog(); vma = gen_qproj(qa, opt, "A", sched["A"])
    qb = Prog(); vmb = gen_qproj(qb, opt, "B", sched["B"])
    qf = Prog(); gen_qfinish(qf, opt)
    stamp(qf, 2, opt)
    p.extend(pro)
    p(f"s_cmp_ge_u32 s{S_W}, 2", "s_cbranch_scc1 L_roleB")
    p.extend(qa); p("s_branch L_qdone"); p("L_roleB:"); p.extend(qb); p("L_qdone:"); p.extend(qf)
    if opt.stop == "q":
        dump_q(p); footer(p)
        check(pro.lines + qa.lines + qf.lines, "A"); check(pro.lines + qb.lines + qf.lines, "B")
        open(opt.o, "w").write(p.text()); return
    mn = Prog(); gen_main(mn, opt, {"A": vma, "B": vmb})
    ep = Prog(); gen_epilogue(ep, opt)
    op_ = Prog(); gen_outproj(op_, opt)
    fb = Prog(); gen_fallback(fb, opt)
    p.extend(mn); p.extend(ep); p.extend(op_); p.extend(fb)
    footer(p)
    ml = mn.lines
    i0 = ml.index("L_loop:"); i1 = [i for i, l in enumerate(ml) if l.startswith("s_cbranch_scc1 L_loop")][0]
    mtrace = ml[:i1 + 1] + ml[i0:i1 + 1] + ml[i1 + 1:]
    e1 = check(pro.lines + qa.lines + qf.lines + mtrace + ep.lines + op_.lines, "A")
    e2 = check(pro.lines + qb.lines + qf.lines + mtrace + ep.lines, "B")
    e3 = check(ep.lines + fb.lines + mtrace[:400], "FB")
    open(opt.o, "w").write(p.text())

main()
```
